```python
import torch

def _softmax(x, axis=-1):
    return torch.softmax(x, dim=axis)
def _gelu(x):
    return torch.nn.functional.gelu(x, approximate="tanh")
def _silu(x):
    return torch.nn.functional.silu(x)
def _sigmoid(x):
    return torch.sigmoid(x)
def _layernorm(x, axis=-1, eps=1e-5):
    m = x.mean(dim=axis, keepdim=True)
    v = x.var(dim=axis, keepdim=True, unbiased=False)
    return (x - m) / torch.sqrt(v + eps)
def _scatter_add(tgt, idx, src, axis=0):
    return tgt.clone().index_add_(axis, idx, src)
def _segment_sum(src, seg, n):
    out = torch.zeros((n,) + src.shape[1:], dtype=src.dtype)
    return out.index_add_(0, seg, src)
def _pad(x, pw):
    flat = tuple(v for pair in reversed(pw) for v in pair)
    return torch.nn.functional.pad(x, flat)

kernel_name = 'parallel_sum__mha_block__dense_activation_gelu__prompt'

def setup_inputs():

    _w = (lambda a: (lambda t: t.to(torch.bfloat16) if t.is_floating_point() else t)(torch.as_tensor(a)))
    def _A_setup():
        B, S, D, H = 1, 2048, 448, 16
        return {
            "x": _w((lambda *s: torch.randn(*s, dtype=torch.bfloat16) * 0.05)(B, S, D)),
            "wqkv": _w((lambda *s: torch.randn(*s, dtype=torch.bfloat16) * 0.05)(D, 3 * D)),
            "wo": _w((lambda *s: torch.randn(*s, dtype=torch.bfloat16) * 0.05)(D, D)),
        }
    _A_in = _A_setup()

    def _B_setup():
        B, S, D, F = 1, 2048, 448, 1792
        return {
            "x": _w((lambda *s: torch.randn(*s, dtype=torch.bfloat16) * 0.05)(B, S, D)),
            "w1": _w((lambda *s: torch.randn(*s, dtype=torch.bfloat16) * 0.8)(D, F) * (D ** -0.5)),
            "b1": _w((lambda *s: torch.randn(*s, dtype=torch.bfloat16) * 12.8)(F) * 0.01),
            "w2": _w((lambda *s: torch.randn(*s, dtype=torch.bfloat16) * 0.4)(F, D) * (F ** -0.5)),
            "b2": _w((lambda *s: torch.randn(*s, dtype=torch.bfloat16) * 6.4)(D) * 0.01),
        }
    _B_in = _B_setup()

    return {
        "A_x": _A_in["x"],
        "A_wqkv": _A_in["wqkv"],
        "A_wo": _A_in["wo"],
        "B_x": _B_in["x"],
        "B_w1": _B_in["w1"],
        "B_b1": _B_in["b1"],
        "B_w2": _B_in["w2"],
        "B_b2": _B_in["b2"],
    }

def reference(A_x, A_wqkv, A_wo, B_x, B_w1, B_b1, B_w2, B_b2):
    def _A_ref(x, wqkv, wo):
        B, S, D = x.shape
        H = 16
        Dh = D // H
        qkv = (lambda x, *d: x.permute(*d))((x @ wqkv).reshape(B, S, 3, H, Dh), 2, 0, 3, 1, 4)
        q, k, v = qkv[0], qkv[1], qkv[2]
        scores = torch.einsum("bhqd,bhkd->bhqk", q, k) * (Dh ** -0.5)
        p = _softmax(scores, axis=-1)
        o = torch.einsum("bhqk,bhkd->bhqd", p, v)
        return (lambda x, *d: x.permute(*d))(o, 0, 2, 1, 3).reshape(B, S, D) @ wo

    def _B_ref(x, w1, b1, w2, b2):
        h = torch.einsum("bsd,df->bsf", x, w1) + b1
        h = _gelu(h)
        return torch.einsum("bsf,fd->bsd", h, w2) + b2

    x = A_x
    xn = _layernorm(x, axis=-1)
    return x + _A_ref(xn, A_wqkv, A_wo) + _B_ref(xn, B_w1, B_b1, B_w2, B_b2)
```

```python
import re

REG_RE = re.compile(r'\b([vas])\[(\d+):(\d+)\]|\b([vas])(\d+)\b|\b(vcc|exec|m0|scc)\b')

def regs_of(tok):
    out = []
    for m in REG_RE.finditer(tok):
        if m.group(1):
            out += [(m.group(1), i) for i in range(int(m.group(2)), int(m.group(3)) + 1)]
        elif m.group(4):
            out.append((m.group(4), int(m.group(5))))
        else:
            out.append((m.group(6), 0))
    return out

TRANS = ('v_exp_f32', 'v_rcp_f32', 'v_rsq_f32', 'v_log_f32', 'v_sqrt_f32', 'v_sin_f32', 'v_cos_f32', 'v_rcp_iflag_f32')

class Ins:
    __slots__ = ('text', 'op', 'kind', 'wr', 'rd', 'passes', 'srcc', 'srcab', 'is_label', 'note', 'trans', 'store_data', 'lds_dma', 'vm', 'lgkm', 'dpp', 'sdwa')
    def __init__(self, text):
        self.text = text
        self.is_label = False
        self.wr = []; self.rd = []
        self.passes = 0; self.srcc = []; self.srcab = []
        self.trans = False; self.store_data = []; self.lds_dma = False
        self.vm = False; self.lgkm = False; self.dpp = False; self.sdwa = False
        t = text.split(';')[0].strip()
        if not t or t.startswith('.') :
            self.kind = 'dir'; self.op = ''; return
        if t.endswith(':'):
            self.kind = 'label'; self.op = t[:-1]; self.is_label = True; return
        parts = t.split(None, 1)
        op = parts[0]; self.op = op
        rest = parts[1] if len(parts) > 1 else ''
        ops = []; depth = 0; cur = ''
        for ch in rest:
            if ch == '[': depth += 1
            if ch == ']': depth -= 1
            if ch == ',' and depth == 0:
                ops.append(cur.strip()); cur = ''
            else: cur += ch
        if cur.strip(): ops.append(cur.strip())
        mods = ''
        if ops:
            sp = ops[-1].split(None, 1)
            if len(sp) > 1:
                ops[-1] = sp[0]; mods = sp[1]
        base = op
        for suf in ('_e32', '_e64', '_sdwa', '_dpp'):
            if base.endswith(suf): base = base[:-len(suf)]
        if op.endswith('_sdwa'): self.sdwa = True
        if op.endswith('_dpp') or 'quad_perm' in mods or 'row_' in mods: self.dpp = True
        R = lambda i: regs_of(ops[i]) if i < len(ops) else []
        if op.startswith('v_mfma'):
            self.kind = 'mfma'
            self.passes = 8 if '32x32' in op else 4
            self.wr = R(0); self.srcab = R(1) + R(2); self.srcc = R(3)
            self.rd = self.srcab + self.srcc
        elif op.startswith('v_'):
            self.kind = 'valu'
            self.trans = base in TRANS
            if base.startswith('v_cmp'):
                self.wr = R(0); self.rd = R(1) + R(2)
                if base.startswith('v_cmpx'): self.wr += [('exec', 0)]
            elif base in ('v_readfirstlane_b32', 'v_readlane_b32'):
                self.wr = R(0); self.rd = R(1) + R(2)
            elif base.startswith('v_permlane') and 'swap' in base:
                self.wr = R(0) + R(1); self.rd = R(0) + R(1)
            elif base in ('v_add_co_u32', 'v_sub_co_u32', 'v_addc_co_u32', 'v_subb_co_u32'):
                self.wr = R(0) + R(1); self.rd = sum((R(i) for i in range(2, len(ops))), [])
            elif base in ('v_fmac_f32', 'v_dot2c_f32_bf16', 'v_writelane_b32'):
                self.wr = R(0); self.rd = sum((R(i) for i in range(0, len(ops))), [])
            else:
                self.wr = R(0); self.rd = sum((R(i) for i in range(1, len(ops))), [])
                if base == 'v_cndmask_b32' and len(ops) == 3: self.rd += [('vcc', 0)]
                if self.sdwa and 'UNUSED_PRESERVE' in mods: self.rd += R(0)
            self.rd.append(('exec', 0))
        elif op.startswith('ds_'):
            self.kind = 'ds'; self.lgkm = True
            if op.startswith('ds_read') or op.startswith('ds_bpermute') or op.startswith('ds_swizzle') or op.startswith('ds_permute'):
                self.wr = R(0); self.rd = sum((R(i) for i in range(1, len(ops))), [])
            else:
                self.rd = sum((R(i) for i in range(0, len(ops))), [])
                if 'rtn' in op: self.wr = R(0)
        elif op.startswith('buffer_') or op.startswith('global_'):
            self.kind = 'vmem'; self.vm = True
            if op in ('buffer_wbl2', 'buffer_inv'):
                pass
            elif ' lds' in (' ' + mods) or '_lds_' in op:
                self.lds_dma = True
                self.rd = sum((R(i) for i in range(0, len(ops))), []) + [('m0', 0)]
            elif '_load' in op:
                self.wr = R(0); self.rd = sum((R(i) for i in range(1, len(ops))), [])
            elif '_store' in op:
                if op.startswith('buffer_'):
                    self.store_data = R(0)
                else:
                    self.store_data = R(1)
                self.rd = sum((R(i) for i in range(0, len(ops))), [])
            elif 'atomic' in op:
                self.rd = sum((R(i) for i in range(0, len(ops))), [])
                if 'sc0' in mods: self.wr = R(0)
        elif op.startswith('s_'):
            self.kind = 'salu'
            if op in ('s_waitcnt', 's_barrier', 's_nop', 's_endpgm', 's_branch', 's_setprio', 's_sleep') or op.startswith('s_cbranch'):
                if op in ('s_cbranch_vccz', 's_cbranch_vccnz'): self.rd = [('vcc', 0)]
                if op in ('s_cbranch_execz', 's_cbranch_execnz'): self.rd = [('exec', 0)]
                if op in ('s_cbranch_scc0', 's_cbranch_scc1'): self.rd = [('scc', 0)]
            elif op.startswith('s_cmp'):
                self.rd = R(0) + R(1); self.wr = [('scc', 0)]
            elif op.startswith('s_load') or op.startswith('s_buffer_load') or op.startswith('s_memtime') or op.startswith('s_memrealtime'):
                self.kind = 'smem'; self.lgkm = True
                self.wr = R(0); self.rd = sum((R(i) for i in range(1, len(ops))), [])
            else:
                self.wr = R(0); self.rd = sum((R(i) for i in range(1, len(ops))), [])
                if 'saveexec' in op: self.wr += [('exec', 0)]; self.rd += [('exec', 0)]
                if op.startswith('s_cselect') or op.startswith('s_addc') : self.rd += [('scc', 0)]
        else:
            raise ValueError('unknown instr ' + text)
    def states(self):
        if self.kind in ('dir', 'label'): return 0
        if self.op == 's_nop':
            return int(self.text.split(';')[0].split()[1], 0) + 1
        return 1

def is_v(r): return r[0] in ('v', 'a')

def required(prev, cur):
    need = 0
    pw = set(prev.wr); cr = set(cur.rd); cw = set(cur.wr)
    if prev.kind == 'valu':
        vw = {r for r in pw if is_v(r)}
        sw = {r for r in pw if r[0] == 's' or r[0] == 'vcc'}
        if cur.kind == 'mfma' and vw & cr: need = max(need, 2)
        if cur.kind == 'mfma' and ('exec', 0) in pw: need = max(need, 4)
        if prev.trans and cur.kind in ('valu', 'ds', 'vmem') and not cur.trans and vw & cr: need = max(need, 1)
        if prev.trans and cur.trans and vw & cr: need = max(need, 1)
        if prev.sdwa and cur.kind == 'valu' and vw & (cr | cw): need = max(need, 1)
        if cur.kind == 'valu':
            if cur.op.startswith('v_readlane') or cur.op.startswith('v_readfirstlane'):
                if vw & cr: need = max(need, 1)
                if sw & cr: need = max(need, 4)
            if cur.op.startswith('v_permlane') and vw & cr: need = max(need, 2)
            if cur.dpp and vw & cr: need = max(need, 2)
            if sw & cr: need = max(need, 2)
            if ('exec', 0) in pw and (cur.dpp): need = max(need, 5)
        if prev.op.startswith('v_dot') and vw & (cr | cw):
            same_acc = cur.op == prev.op and cur.wr == prev.wr and not (vw & set(cur.rd[:-2]))
            if not same_acc: need = max(need, 3)
        if cur.kind == 'vmem' and {r for r in sw if r[0] == 's'} & cr: need = max(need, 5)
        if cur.kind == 'salu' and sw & cr: need = max(need, 1)
    if prev.kind == 'mfma':
        p = prev.passes
        big = 12 if p == 8 else 8
        if cur.kind == 'mfma':
            if pw & set(cur.srcab): need = max(need, big)
            if pw & set(cur.srcc):
                if not (cur.srcc == prev.wr and cur.passes == prev.passes):
                    need = max(need, 10 if p == 8 else 6)
            if pw & cw and cur.passes != prev.passes: need = max(need, big)
        elif cur.kind in ('valu', 'ds', 'vmem'):
            if pw & (cr | cw): need = max(need, big)
        if cur.kind == 'valu' and set(prev.srcc) & cw: need = max(need, 7 if p == 8 else 3)
        if cur.kind in ('ds', 'vmem') and set(prev.srcc) & cw: need = max(need, 7 if p == 8 else 3)
    if prev.kind == 'vmem' and prev.store_data and len(prev.store_data) >= 3:
        if set(prev.store_data) & cw:
            need = max(need, 2)
    if prev.kind == 'salu' and ('m0', 0) in pw and (cur.lds_dma): need = max(need, 1)
    return need

class Kernel:
    def __init__(self, name):
        self.name = name
        self.ins = []
    def __call__(self, text):
        for line in text.split('\n'):
            if line.strip(): self.ins.append(Ins(line.strip()))
    def label(self, l): self.ins.append(Ins(l + ':'))
    def extend(self, lst):
        for t in lst: self(t)

    def fix_hazards(self, window=24):
        ins = self.ins
        changed = True; total = 0
        labels = None
        while changed:
            changed = False
            labels = {x.op: i for i, x in enumerate(ins) if x.is_label}
            preds = {}
            for i, x in enumerate(ins):
                if x.kind == 'salu' and (x.op.startswith('s_cbranch') or x.op == 's_branch'):
                    tgt = x.text.split(';')[0].split()[1]
                    preds.setdefault(labels[tgt], []).append(i)
            def walk_back(i, dist, acc, depth):
                j = i - 1
                while j >= 0 and dist < window:
                    x = ins[j]
                    if x.is_label:
                        if depth < 3:
                            for b in preds.get(j, []):
                                walk_back(b + 1, dist, acc, depth + 1)
                        k = j - 1
                        while k >= 0 and ins[k].kind in ('dir', 'label'): k -= 1
                        if k >= 0 and ins[k].op in ('s_branch', 's_endpgm'): return
                        j -= 1; continue
                    if x.kind == 'dir': j -= 1; continue
                    acc.append((j, dist))
                    dist += x.states()
                    j -= 1
            for i, cur in enumerate(ins):
                if cur.kind in ('dir', 'label'): continue
                acc = []
                walk_back(i, 0, acc, 0)
                short = 0
                for (j, d) in acc:
                    n = required(ins[j], cur)
                    if n > d: short = max(short, n - d)
                if short:
                    nops = []
                    s = short
                    while s > 0:
                        k = min(s, 16); nops.append(Ins(f's_nop {k-1}')); s -= k
                    ins[i:i] = nops
                    total += short
                    changed = True
                    break
        return total

    def text(self):
        out = []
        for x in self.ins:
            if x.kind in ('label', 'dir'): out.append(x.text)
            else: out.append('    ' + x.text)
        return '\n'.join(out) + '\n'

def check_waits(trace, name=''):
    vmq = []
    lgq = []
    errs = []
    for n, x in enumerate(trace):
        if x.kind in ('dir', 'label'): continue
        if x.op == 's_waitcnt':
            m = re.search(r'vmcnt\((\d+)\)', x.text)
            if m:
                k = int(m.group(1))
                while len(vmq) > k: vmq.pop(0)
            m = re.search(r'lgkmcnt\((\d+)\)', x.text)
            if m:
                k = int(m.group(1))
                if any(e[1] == 'smem' for e in lgq) and k > 0:
                    errs.append((n, x.text, 'counted lgkmcnt with smem outstanding'))
                while len(lgq) > k: lgq.pop(0)
            continue
        touched = set(x.rd) | set(x.wr)
        for q, nm in ((vmq, 'vm'), (lgq, 'lgkm')):
            for e in q:
                w = e[0]
                if w & touched:
                    errs.append((n, x.text, f'touches {sorted(w & touched)[:4]} with outstanding {nm} op: {e[2]}'))
        if x.vm: vmq.append((set(x.wr), 'vm', x.text))
        if x.lgkm: lgq.append((set(x.wr), 'smem' if x.kind == 'smem' else 'ds', x.text))
        if len(vmq) > 63: errs.append((n, x.text, 'vmcnt overflow'))
        if len(lgq) > 15 and False: errs.append((n, x.text, 'lgkmcnt overflow'))
    return errs
```

```python
from asmlib import *
S=2048; D=448; H=16; DH=28; F=1792
QF_OFF = 0x000000
KF_OFF = 0x200000
VF_OFF = 0x400000
AF_OFF = 0x600000
AF_RT_STRIDE = 72*2048
WS_USED = AF_OFF + 64*AF_RT_STRIDE
assert WS_USED <= 0x1000000
WS_RECORDS = 0x1000000
KA_X=0; KA_WQKV=8; KA_WO=16; KA_BX=24; KA_W1=32; KA_B1=40; KA_W2=48; KA_B2=56; KA_OUT=64; KA_DBG=72; KA_WS=80

def srd(k, dst, base_lo, nbytes):
    k(f's_mov_b32 s{dst}, s{base_lo}')
    k(f's_and_b32 s{dst+1}, s{base_lo+1}, 0xffff')
    k(f's_mov_b32 s{dst+2}, {nbytes}')
    k(f's_mov_b32 s{dst+3}, 0x00020000')

def kernel_header(name):
    return f""".globl {name}
.p2align 8
.type {name},@function
{name}:
"""
def kernel_desc(name, nvgpr, nsgpr=102, accum=None):
    if accum is None: accum = (nvgpr+3)//4*4
    return f""".p2align 6
.amdhsa_kernel {name}
  .amdhsa_next_free_vgpr {nvgpr}
  .amdhsa_next_free_sgpr {nsgpr}
  .amdhsa_accum_offset {accum}
  .amdhsa_group_segment_fixed_size 0
  .amdhsa_kernarg_size 88
  .amdhsa_user_sgpr_count 2
  .amdhsa_user_sgpr_kernarg_segment_ptr 1
  .amdhsa_system_sgpr_workgroup_id_x 1
.end_amdhsa_kernel
"""
def vr(a, n): return f'v[{a}:{a+n-1}]'
```

```python
from common import *
import struct, math
def f32bits(x): return struct.unpack('<I', struct.pack('<f', x))[0]

GELU_A = -2.0*math.log2(math.e)*math.sqrt(2.0/math.pi)
GELU_B = GELU_A*0.044715
QSCALE = (DH ** -0.5)*math.log2(math.e)

DEBUG=False
def gen_k1(name='proj_kernel'):
    k = Kernel(name)
    X = 32; ACC = 144; E = 160; WF = 176; BI = 188; PK = 204; TM = 212
    SLOT = 57344; XS = 2*SLOT; BIAS = XS + 16384
    LDS = BIAS + 1024
    sW=12; sG=13; sI=14; sT=15; sT2=16; sT3=17; sPar=18; sRS=19; sLine=20; sLStep=21; sU=22; sXoff=23
    sGB=24; sRT=25; sOut=26; sScale=27; sTile=28; sDm=29; sDs=30; sA=31; sB=32; sF0=33; sF1=34; sQ7=35; sHi=56; sType=37; sGL=38; sRS32=39
    vLane=1; vL16=2; vT=3; vT2=4; vT3=5; vDma=6; vTrB=7; vTr=8; vXo=9
    vXw0=13; vXw1=14; vXr=15
    vS1=19; vS1b=20; vS2=21; vS2b=22; vRS=24; vNM=26; vHH=27; vRow16=28; vGA=29; vSt=30; vOnes=31
    k('s_cmp_ge_u32 s2, 224')
    k('s_cbranch_scc1 K1_END')
    k(f's_load_dwordx2 s[4:5], s[0:1], {KA_WS}')
    k(f's_load_dwordx2 s[52:53], s[0:1], {KA_X}')
    k(f's_load_dwordx2 s[54:55], s[0:1], {KA_WQKV}')
    k(f's_load_dwordx2 s[58:59], s[0:1], {KA_W1}')
    k(f's_load_dwordx2 s[60:61], s[0:1], {KA_B1}')
    k(f'v_and_b32 v{vLane}, 63, v0')
    k(f'v_lshrrev_b32 v{vT}, 6, v0')
    k(f'v_lshlrev_b32 v{vL16}, 4, v{vLane}')
    k(f'v_readfirstlane_b32 s{sW}, v{vT}')
    k(f's_and_b32 s{sT}, s2, 7')
    k(f's_lshr_b32 s{sT2}, s2, 3')
    k(f's_mul_i32 s{sT3}, s{sT2}, 37')
    k(f's_lshr_b32 s{sT3}, s{sT3}, 8')
    k(f's_mul_i32 s{sG}, s{sT3}, 7')
    k(f's_sub_u32 s{sG}, s{sT2}, s{sG}')
    k(f's_and_b32 s{sT2}, s{sT}, 1')
    k(f's_mul_i32 s{sT2}, s{sT2}, 7')
    k(f's_add_u32 s{sG}, s{sG}, s{sT2}')
    k(f's_lshr_b32 s{sT}, s{sT}, 1')
    k(f's_lshl_b32 s{sT}, s{sT}, 2')
    k(f's_add_u32 s{sI}, s{sT}, s{sT3}')
    k(f's_and_b32 s{sPar}, s{sG}, 1')
    k(f's_mov_b32 s{sHi}, 0')
    k(f's_mov_b32 s{sHi+1}, -1')
    k(f's_cmp_lt_u32 s{sG}, 6')
    k(f's_mov_b32 s{sRS}, 3584')
    k(f's_cselect_b32 s{sRS}, 2688, s{sRS}')
    k(f's_cselect_b32 s{sT}, 0, 6')
    k(f's_sub_u32 s{sGL}, s{sG}, s{sT}')
    k(f's_mul_i32 s{sGB}, s{sGL}, 448')
    k(f's_cmp_eq_u32 s{sPar}, 0')
    k(f's_cselect_b32 s{sT}, 0, 320')
    k(f's_mov_b32 s{sLStep}, -128')
    k(f's_cselect_b32 s{sLStep}, 128, s{sLStep}')
    k(f's_add_u32 s{sLine}, s{sGB}, s{sT}')
    k(f's_lshl_b32 s{sRS32}, s{sRS}, 5')
    k(f's_lshl_b32 s{sRT}, s{sI}, 2')
    k(f's_add_u32 s{sRT}, s{sRT}, s{sW}')
    k(f's_mul_i32 s{sXoff}, s{sRT}, {32*896}')
    k(f'v_lshrrev_b32 v{vT}, 3, v{vLane}')
    k(f'v_mul_lo_u32 v{vDma}, v{vT}, s{sRS}')
    k(f'v_bfe_u32 v{vT2}, v{vLane}, 4, 1')
    k(f'v_lshlrev_b32 v{vT2}, 2, v{vT2}')
    k(f'v_and_b32 v{vT3}, 7, v{vLane}')
    k(f'v_xor_b32 v{vT2}, v{vT2}, v{vT3}')
    k(f'v_lshlrev_b32 v{vT2}, 4, v{vT2}')
    k(f'v_add_u32 v{vDma}, v{vDma}, v{vT2}')
    k(f'v_mul_u32_u24 v{vXo}, 896, v{vT}')
    k(f'v_lshlrev_b32 v{vT2}, 4, v{vT3}')
    k(f'v_add_u32 v{vXo}, v{vXo}, v{vT2}')
    for u in range(1, 4): k(f'v_add_u32 v{vXo+u}, {u*8*896}, v{vXo}')
    k(f'v_lshrrev_b32 v{vT2}, 4, v{vLane}')
    k(f'v_xor_b32 v{vT2}, v{vT2}, v{vT3}')
    k(f'v_lshlrev_b32 v{vT2}, 4, v{vT2}')
    k(f'v_lshlrev_b32 v{vXw0}, 7, v{vT}')
    k(f'v_add_u32 v{vXw0}, v{vXw0}, v{vT2}')
    k(f's_lshl_b32 s{sT}, s{sW}, 12')
    k(f's_add_u32 s{sT}, s{sT}, {XS}')
    k(f'v_add_u32 v{vXw0}, s{sT}, v{vXw0}')
    k(f'v_xor_b32 v{vXw1}, 64, v{vXw0}')
    k(f'v_and_b32 v{vT}, 31, v{vLane}')
    k(f'v_lshlrev_b32 v{vRow16}, 4, v{vT}')
    k(f'v_lshrrev_b32 v{vHH}, 5, v{vLane}')
    k(f'v_bfe_u32 v{vT2}, v{vT}, 1, 3')
    k(f'v_xor_b32 v{vT2}, v{vT2}, v{vHH}')
    k(f'v_lshlrev_b32 v{vT2}, 4, v{vT2}')
    k(f'v_lshlrev_b32 v{vXr}, 7, v{vT}')
    k(f'v_add_u32 v{vXr}, v{vXr}, v{vT2}')
    k(f'v_add_u32 v{vXr}, s{sT}, v{vXr}')
    for s in range(1, 4): k(f'v_xor_b32 v{vXr+s}, {32*s}, v{vXr}')
    k(f'v_lshlrev_b32 v{vT}, 3, v{vHH}')
    k(f'v_bfe_u32 v{vT2}, v{vLane}, 2, 2')
    k(f'v_add_u32 v{vT}, v{vT}, v{vT2}')
    k(f'v_lshlrev_b32 v{vTrB}, 7, v{vT}')
    k(f'v_lshrrev_b32 v{vT2}, 1, v{vT2}')
    k(f'v_lshlrev_b32 v{vT2}, 6, v{vT2}')
    k(f'v_add_u32 v{vTrB}, v{vTrB}, v{vT2}')
    k(f'v_bfe_u32 v{vT}, v{vLane}, 4, 1')
    k(f'v_lshlrev_b32 v{vT}, 5, v{vT}')
    k(f'v_add_u32 v{vTrB}, v{vTrB}, v{vT}')
    k(f'v_and_b32 v{vT}, 3, v{vLane}')
    k(f'v_lshlrev_b32 v{vT}, 3, v{vT}')
    k(f'v_add_u32 v{vTrB}, v{vTrB}, v{vT}')
    k(f'v_mov_b32 v{vOnes}, 0x3f803f80')
    k('s_waitcnt lgkmcnt(0)')
    srd(k, 8, 4, WS_RECORDS)
    srd(k, 40, 52, S*896)
    k(f's_cmp_lt_u32 s{sG}, 6')
    k('s_cselect_b32 s44, s54, s58')
    k('s_cselect_b32 s45, s55, s59')
    k('s_and_b32 s45, s45, 0xffff')
    k(f's_mul_i32 s46, s{sRS}, 448')
    k('s_mov_b32 s47, 0x00020000')
    srd(k, 48, 60, F*2)
    for p in range(7):
        for u in range(4):
            k(f'buffer_load_dwordx4 {vr(X+16*p+4*u,4)}, v{vXo+u}, s[40:43], s{sXoff} offen offset:{p*128}')
    def dma_line(slot_expr_const=None):
        k(f's_mul_i32 s{sDs}, s{sW}, s{sRS}')
        k(f's_lshl_b32 s{sDs}, s{sDs}, 3')
        k(f's_add_u32 s{sDs}, s{sDs}, s{sLine}')
        k(f's_lshl_b32 s{sT}, s{sW}, 10')
        k(f's_add_u32 s{sT}, s{sT}, s{sDm}')
        for v in range(14):
            k(f's_mov_b32 m0, s{sT}')
            k(f's_add_u32 s{sT}, s{sT}, 4096')
            k(f'buffer_load_dwordx4 v{vDma}, s[44:47], s{sDs} offen lds')
            k(f's_add_u32 s{sDs}, s{sDs}, s{sRS32}')
        k(f's_add_u32 s{sLine}, s{sLine}, s{sLStep}')
    k(f's_mov_b32 s{sDm}, 0')
    dma_line()
    k(f's_mov_b32 s{sDm}, {SLOT}')
    dma_line()
    k(f's_mul_i32 s{sT}, s{sGL}, 448')
    k(f'v_lshlrev_b32 v{vT}, 1, v0')
    k(f'buffer_load_ushort v{vT2}, v{vT}, s[48:51], s{sT} offen')
    k(f'v_mov_b32 v{vS1}, 0'); k(f'v_mov_b32 v{vS1b}, 0'); k(f'v_mov_b32 v{vS2}, 0'); k(f'v_mov_b32 v{vS2b}, 0')
    for p in range(7):
        k(f's_waitcnt vmcnt({29 + 4*(6-p)})')
        for u in range(4):
            k(f'ds_write_b128 v{vXw0 if u % 2 == 0 else vXw1}, {vr(X+16*p+4*u,4)} offset:{u*1024}')
        for s in range(4):
            k(f'ds_read_b128 {vr(X+16*p+4*s,4)}, v{vXr+s}')
        if p > 0:
            for r in range(16):
                if r == 0: k('s_waitcnt lgkmcnt(8)')
                x = X+16*(p-1)+r
                k(f'v_dot2_f32_bf16 v{vS1 if r%2==0 else vS1b}, v{x}, v{vOnes}, v{vS1 if r%2==0 else vS1b}')
                k(f'v_dot2_f32_bf16 v{vS2 if r%2==0 else vS2b}, v{x}, v{x}, v{vS2 if r%2==0 else vS2b}')
    k('s_waitcnt lgkmcnt(0)')
    for r in range(16):
        x = X+16*6+r
        k(f'v_dot2_f32_bf16 v{vS1 if r%2==0 else vS1b}, v{x}, v{vOnes}, v{vS1 if r%2==0 else vS1b}')
        k(f'v_dot2_f32_bf16 v{vS2 if r%2==0 else vS2b}, v{x}, v{x}, v{vS2 if r%2==0 else vS2b}')
    k(f'v_add_f32 v{vS1}, v{vS1}, v{vS1b}')
    k(f'v_add_f32 v{vS2}, v{vS2}, v{vS2b}')
    k(f'v_mov_b32 v{vS1b}, v{vS1}')
    k(f'v_mov_b32 v{vS2b}, v{vS2}')
    k(f'v_permlane32_swap_b32 v{vS1}, v{vS1b}')
    k(f'v_permlane32_swap_b32 v{vS2}, v{vS2b}')
    k(f'v_add_f32 v{vS1}, v{vS1}, v{vS1b}')
    k(f'v_add_f32 v{vS2}, v{vS2}, v{vS2b}')
    k(f's_mov_b32 s{sT}, {f32bits(1.0/448)}')
    k(f'v_mul_f32 v{vS1}, s{sT}, v{vS1}')
    k(f'v_mul_f32 v{vS2}, s{sT}, v{vS2}')
    k(f'v_fma_f32 v{vS2}, -v{vS1}, v{vS1}, v{vS2}')
    k(f'v_max_f32 v{vS2}, 0, v{vS2}')
    k(f'v_add_f32 v{vS2}, {f32bits(1e-5)}, v{vS2}')
    k(f'v_rsq_f32 v{vRS}, v{vS2}')
    k(f'v_mul_f32 v{vNM}, v{vS1}, v{vRS}')
    k(f'v_sub_f32 v{vNM}, 0, v{vNM}')
    if DEBUG:
        k(f's_lshl_b32 s{sT}, s{sRT}, 9')
        k(f's_add_u32 s{sT}, s{sT}, 0xF00000')
        k(f'v_lshlrev_b32 v{vT3}, 3, v{vLane}')
        k(f'v_mov_b32 v{TM}, v{vS1}')
        k(f'v_mov_b32 v{TM+1}, v{vRS}')
        k(f'buffer_store_dwordx2 {vr(TM,2)}, v{vT3}, s[8:11], s{sT} offen')
    k('s_waitcnt vmcnt(0)')
    k(f'v_lshlrev_b32 v{vT2}, 16, v{vT2}')
    k(f'v_lshlrev_b32 v{vT}, 2, v0')
    k(f'v_add_u32 v{vT}, {BIAS}, v{vT}')
    k(f'ds_write_b32 v{vT}, v{vT2}')
    k(f's_mov_b32 s{sT}, 0xffff0000')
    for r in range(112):
        t = TM + 2*(r % 4)
        x = X + r
        k(f'v_lshlrev_b32 v{t}, 16, v{x}')
        k(f'v_and_b32 v{t+1}, s{sT}, v{x}')
        k(f'v_pk_fma_f32 {vr(t,2)}, {vr(t,2)}, {vr(vRS,2)}, {vr(vNM,2)} op_sel_hi:[1,0,0]')
        k(f'v_cvt_pk_bf16_f32 v{x}, v{t}, v{t+1}')
    k(f's_mov_b32 s{sA}, {f32bits(GELU_A)}')
    k(f's_mov_b32 s{sB}, {f32bits(GELU_B)}')
    k(f'v_mov_b32 v{vGA}, s{sA}')
    k(f's_mov_b32 s{sU}, 0')
    k('s_waitcnt lgkmcnt(0)')
    k(f's_cmp_lt_u32 s{sG}, 4')
    k('s_cbranch_scc1 K1_QK')
    k(f's_cmp_lt_u32 s{sG}, 6')
    k('s_cbranch_scc1 K1_V')

    def tile_params():
        k(f's_sub_u32 s{sT}, 6, s{sU}')
        k(f's_cmp_eq_u32 s{sPar}, 0')
        k(f's_cselect_b32 s{sTile}, s{sU}, s{sT}')
        k(f's_and_b32 s{sT}, s{sU}, 1')
        k(f's_xor_b32 s{sT}, s{sT}, s{sPar}')
        k(f's_lshl_b32 s{sT}, s{sT}, 6')
        k(f'v_xor_b32 v{vTr}, s{sT}, v{vTrB}')
        k(f's_bfe_u32 s{sT}, s{sU}, 0x10001')
        k(f's_mul_i32 s{sT}, s{sT}, {SLOT}')
        k(f'v_add_u32 v{vTr}, s{sT}, v{vTr}')

    def body(typ):
        L = f'K1_{typ}'
        k.label(L)
        if typ == 'QK':
            k(f's_cmp_lt_u32 s{sG}, 2')
            k(f's_mov_b32 s{sOut}, {KF_OFF}')
            k(f's_cselect_b32 s{sOut}, {QF_OFF}, s{sOut}')
            k(f's_cselect_b32 s{sScale}, {f32bits(QSCALE)}, {f32bits(1.0)}')
            k(f's_lshl_b32 s{sT}, s{sPar}, 20')
            k(f's_add_u32 s{sOut}, s{sOut}, s{sT}')
            k(f's_lshl_b32 s{sT}, s{sRT}, 11')
            k(f's_add_u32 s{sOut}, s{sOut}, s{sT}')
        elif typ == 'V':
            k(f's_lshl_b32 s{sT}, s{sPar}, 20')
            k(f's_add_u32 s{sOut}, s{sT}, {VF_OFF}')
            k(f's_lshl_b32 s{sT}, s{sRT}, 11')
            k(f's_add_u32 s{sOut}, s{sOut}, s{sT}')
        else:
            k(f's_mul_i32 s{sOut}, s{sRT}, {AF_RT_STRIDE}')
            k(f's_mul_i32 s{sT}, s{sGL}, {7*2048}')
            k(f's_add_u32 s{sOut}, s{sOut}, s{sT}')
            k(f's_add_u32 s{sOut}, s{sOut}, {AF_OFF}')
        k.label(L + '_LOOP')
        k(f's_bitcmp1_b32 s{sU}, 0')
        k(f's_cbranch_scc1 {L}_NOSYNC')
        k('s_waitcnt vmcnt(0)')
        k('s_barrier')
        k(f's_cmp_eq_u32 s{sU}, 0')
        k(f's_cbranch_scc1 {L}_NOSYNC')
        k(f's_cmp_eq_u32 s{sU}, 6')
        k(f's_cbranch_scc1 {L}_NOSYNC')
        k(f's_bfe_u32 s{sT}, s{sU}, 0x10001')
        k(f's_xor_b32 s{sT}, s{sT}, 1')
        k(f's_mul_i32 s{sDm}, s{sT}, {SLOT}')
        dma_line()
        k.label(L + '_NOSYNC')
        tile_params()
        if typ == 'M':
            k(f's_lshl_b32 s{sT}, s{sTile}, 7')
            k(f's_add_u32 s{sT}, s{sT}, {BIAS}')
            k(f'v_lshlrev_b32 v{vT}, 4, v{vHH}')
            k(f'v_add_u32 v{vT}, s{sT}, v{vT}')
            for c in range(4):
                k(f'ds_read_b128 {vr(BI+4*c,4)}, v{vT} offset:{c*32}')
        def rd(ks):
            w = WF + 4*(ks % 3)
            k(f'ds_read_b64_tr_b16 {vr(w,2)}, v{vTr} offset:{ks*2048}')
            k(f'ds_read_b64_tr_b16 {vr(w+2,2)}, v{vTr} offset:{ks*2048+512}')
        rd(0); rd(1)
        for ks in range(28):
            if ks + 2 < 28: rd(ks+2)
            left = min(2, 27-ks)
            k(f's_waitcnt lgkmcnt({2*left})')
            w = WF + 4*(ks % 3)
            xf = X + 4*ks
            dst = E if ks == 27 else ACC
            if ks == 0: src = vr(BI,16) if typ == 'M' else '0'
            else: src = vr(ACC,16)
            if typ == 'V':
                k(f'v_mfma_f32_32x32x16_bf16 {vr(dst,16)}, {vr(xf,4)}, {vr(w,4)}, {src}')
            else:
                k(f'v_mfma_f32_32x32x16_bf16 {vr(dst,16)}, {vr(w,4)}, {vr(xf,4)}, {src}')
        if typ == 'M':
            for r in range(16):
                t = TM + 2*(r % 4)
                k(f'v_mul_f32 v{t}, v{E+r}, v{E+r}')
                k(f'v_fma_f32 v{t}, v{t}, s{sB}, v{vGA}')
                k(f'v_mul_f32 v{t}, v{t}, v{E+r}')
                k(f'v_exp_f32 v{t}, v{t}')
                k(f'v_add_f32 v{t}, 1.0, v{t}')
                k(f'v_rcp_f32 v{t}, v{t}')
                k(f'v_mul_f32 v{E+r}, v{E+r}, v{t}')
            for c in range(8):
                k(f'v_cvt_pk_bf16_f32 v{PK+c}, v{E+2*c}, v{E+2*c+1}')
            k(f's_lshl_b32 s{sT}, s{sTile}, 11')
            k(f's_add_u32 s{sT}, s{sT}, s{sOut}')
            k(f'buffer_store_dwordx4 {vr(PK,4)}, v{vL16}, s[8:11], s{sT} offen')
            k(f'buffer_store_dwordx4 {vr(PK+4,4)}, v{vL16}, s[8:11], s{sT} offen offset:1024')
        elif typ == 'V':
            for c in range(8):
                k(f'v_cvt_pk_bf16_f32 v{PK+c}, v{E+2*c}, v{E+2*c+1}')
            k(f's_lshl_b32 s{sT}, s{sTile}, 5')
            k(f'v_lshrrev_b32 v{vT}, 4, v{vRow16}')
            k(f'v_add_u32 v{vT}, s{sT}, v{vT}')
            k(f'v_mul_u32_u24 v{vT2}, 2341, v{vT}')
            k(f'v_lshrrev_b32 v{vT2}, 16, v{vT2}')
            k(f'v_mul_u32_u24 v{vT3}, 28, v{vT2}')
            k(f'v_sub_u32 v{vT}, v{vT}, v{vT3}')
            k(f'v_lshlrev_b32 v{vT}, 4, v{vT}')
            k(f'v_lshlrev_b32 v{vT2}, 17, v{vT2}')
            k(f'v_add_u32 v{vT}, v{vT}, v{vT2}')
            k(f'v_lshlrev_b32 v{vT2}, 9, v{vHH}')
            k(f'v_add_u32 v{vSt}, v{vT}, v{vT2}')
            k(f'buffer_store_dwordx4 {vr(PK,4)}, v{vSt}, s[8:11], s{sOut} offen')
            k(f'buffer_store_dwordx4 {vr(PK+4,4)}, v{vSt}, s[8:11], s{sOut} offen offset:1024')
        else:
            for r in range(16):
                k(f'v_mul_f32 v{E+r}, s{sScale}, v{E+r}')
            for c in range(8):
                k(f'v_cvt_pk_bf16_f32 v{PK+c}, v{E+2*c}, v{E+2*c+1}')
            def fG(dst, gs):
                k(f's_mul_i32 s{sQ7}, s{gs}, 37')
                k(f's_lshr_b32 s{sQ7}, s{sQ7}, 8')
                k(f's_mul_i32 s{sT3}, s{sQ7}, 7')
                k(f's_sub_u32 s{sT3}, s{gs}, s{sT3}')
                k(f's_lshl_b32 s{dst}, s{sQ7}, 17')
                k(f's_lshr_b32 s{sQ7}, s{sT3}, 1')
                k(f's_lshl_b32 s{sQ7}, s{sQ7}, 9')
                k(f's_add_u32 s{dst}, s{dst}, s{sQ7}')
                k(f's_and_b32 s{sT3}, s{sT3}, 1')
                k(f's_lshl_b32 s{sT3}, s{sT3}, 3')
                k(f's_add_u32 s{dst}, s{dst}, s{sT3}')
            for c in range(4):
                k(f's_lshl_b32 s{sT}, s{sTile}, 3')
                k(f's_add_u32 s{sT}, s{sT}, {2*c}')
                fG(sF0, sT)
                k(f's_add_u32 s{sT}, s{sT}, 1')
                fG(sF1, sT)
                k(f's_sub_u32 s{sF1}, s{sF1}, s{sF0}')
                k(f's_add_u32 s{sF0}, s{sF0}, s{sOut}')
                k(f'v_mad_u32_u24 v{vSt}, v{vHH}, s{sF1}, v{vRow16}')
                k(f'buffer_store_dwordx2 {vr(PK+2*c,2)}, v{vSt}, s[8:11], s{sF0} offen')
        k(f's_add_u32 s{sU}, s{sU}, 1')
        k(f's_cmp_lt_u32 s{sU}, 7')
        k(f's_cbranch_scc1 {L}_LOOP')
        if typ == 'QK':
            k(f's_cmp_lt_u32 s{sG}, 2')
            k('s_cbranch_scc1 K1_END')
            k(f'v_mov_b32 v{PK}, v{vOnes}')
            k(f'v_mov_b32 v{PK+1}, v{vOnes}')
            k(f'v_lshlrev_b32 v{vT}, 17, v{vHH}')
            k(f'v_add_u32 v{vT}, v{vT}, v{vRow16}')
            for v in range(4):
                k(f's_add_u32 s{sT}, s{sOut}, {2*v*131072 + 1536 + 8}')
                k(f'buffer_store_dwordx2 {vr(PK,2)}, v{vT}, s[8:11], s{sT} offen')
            k('s_branch K1_END')
        elif typ == 'V':
            k(f'v_lshrrev_b32 v{vT}, 4, v{vLane}')
            k(f'v_lshlrev_b32 v{vT}, 17, v{vT}')
            k(f'v_bfe_u32 v{vT2}, v{vLane}, 2, 2')
            k(f'v_lshlrev_b32 v{vT2}, 9, v{vT2}')
            k(f'v_add_u32 v{vT}, v{vT}, v{vT2}')
            k(f'v_and_b32 v{vT2}, 3, v{vLane}')
            k(f'v_lshlrev_b32 v{vT3}, 4, v{vT2}')
            k(f'v_add_u32 v{vT}, v{vT}, v{vT3}')
            k(f'v_cmp_eq_u32 vcc, 0, v{vT2}')
            for c in range(4): k(f'v_cndmask_b32 v{PK+c}, 0, v{vOnes}, vcc')
            for v in range(2):
                k(f's_add_u32 s{sT}, s{sOut}, {4*v*131072 + 28*16}')
                k(f'buffer_store_dwordx4 {vr(PK,4)}, v{vT}, s[8:11], s{sT} offen')
            k('s_branch K1_END')
    body('M')
    k('s_branch K1_END')
    body('QK')
    body('V')
    k.label('K1_END')
    k('s_endpgm')
    k.fix_hazards()
    return k, 224, LDS
```

```python
from common import *

def gen_k2(name='attn_kernel'):
    k = Kernel(name)
    Q = 32
    O = 64
    SS = 128
    P = 160
    KV = 168
    sW = 12; sH = 13; sQB = 14; sQoff = 15; sKoff = 16; sT = 17; sCnt = 18; sHi = 20
    sT2 = 19; sAF = 22
    vLane = 1; vL16 = 2; vK = 3; vV = 4; vT = 5; vT2 = 6; vT3 = 7; vC = 8; vA0 = 9; vA1 = 10; vA2 = 11; vA3=12; vM = 13; vM2 = 14; vL = 15; vL2=16
    k('s_cmp_ge_u32 s2, 256')
    k('s_cbranch_scc1 K2_END')
    k(f's_load_dwordx2 s[4:5], s[0:1], {KA_WS}')
    k(f'v_and_b32 v{vLane}, 63, v0')
    k(f'v_lshrrev_b32 v{vT}, 6, v0')
    k(f'v_lshlrev_b32 v{vL16}, 4, v{vLane}')
    k(f'v_readfirstlane_b32 s{sW}, v{vT}')
    k(f's_and_b32 s{sT}, s2, 7')
    k(f's_lshr_b32 s{sT2}, s2, 3')
    k(f's_lshl_b32 s{sH}, s{sT}, 1')
    k(f's_and_b32 s{sT}, s{sT2}, 1')
    k(f's_add_u32 s{sH}, s{sH}, s{sT}')
    k(f's_lshr_b32 s{sQB}, s{sT2}, 1')
    k(f's_mov_b32 s{sHi}, 0')
    k(f's_mov_b32 s{sHi+1}, -1')
    k(f'v_add_u32 v{vK}, {KF_OFF}, v{vL16}')
    k(f'v_add_u32 v{vV}, {VF_OFF}, v{vL16}')
    k(f's_lshl_b32 s{sT}, s{sH}, 6')
    k(f's_lshl_b32 s{sT2}, s{sQB}, 2')
    k(f's_add_u32 s{sT}, s{sT}, s{sT2}')
    k(f's_lshl_b32 s{sQoff}, s{sT}, 11')
    if QF_OFF: k(f's_add_u32 s{sQoff}, s{sQoff}, {QF_OFF}')
    k(f's_lshl_b32 s{sT}, s{sH}, 6')
    k(f's_lshl_b32 s{sT2}, s{sW}, 4')
    k(f's_add_u32 s{sT}, s{sT}, s{sT2}')
    k(f's_lshl_b32 s{sKoff}, s{sT}, 11')
    k('s_waitcnt lgkmcnt(0)')
    srd(k, 8, 4, WS_RECORDS)
    for j in range(4):
        k(f's_add_u32 s{sT}, s{sW}, {j}')
        k(f's_and_b32 s{sT}, s{sT}, 3')
        k(f's_lshl_b32 s{sT}, s{sT}, 11')
        k(f's_add_u32 s{sT}, s{sT}, s{sQoff}')
        k(f'buffer_load_dwordx4 {vr(Q+8*j,4)}, v{vL16}, s[8:11], s{sT} offen')
        k(f'buffer_load_dwordx4 {vr(Q+8*j+4,4)}, v{vL16}, s[8:11], s{sT} offen offset:1024')
    def load_tile(buf):
        b = KV + 16*buf
        k(f'buffer_load_dwordx4 {vr(b,4)}, v{vK}, s[8:11], s{sKoff} offen')
        k(f'buffer_load_dwordx4 {vr(b+4,4)}, v{vK}, s[8:11], s{sKoff} offen offset:1024')
        k(f'buffer_load_dwordx4 {vr(b+8,4)}, v{vV}, s[8:11], s{sKoff} offen')
        k(f'buffer_load_dwordx4 {vr(b+12,4)}, v{vV}, s[8:11], s{sKoff} offen offset:1024')
        k(f's_add_u32 s{sKoff}, s{sKoff}, 2048')
    for t in range(3): load_tile(t)
    for i in range(64): k(f'v_mov_b32 v{O+i}, 0')
    for i in range(4, 8): k(f'v_mov_b32 v{P+i}, 0')
    for i in range(4): k(f'v_mov_b32 v{KV+48+12+i}, 0')
    CX = 49152
    k(f'v_and_b32 v{vT}, 31, v{vLane}')
    k(f'v_lshlrev_b32 v{vT}, 2, v{vT}')
    k(f'v_add_u32 v{vT}, {CX}, v{vT}')
    for j in range(4):
        k(f's_add_u32 s{sT}, s{sW}, {j}')
        k(f's_and_b32 s{sT}, s{sT}, 3')
        k(f's_lshl_b32 s{sT}, s{sT}, 7')
        k(f'v_add_u32 v{vA0+j}, s{sT}, v{vT}')
    k('s_waitcnt vmcnt(10)')
    k(f'v_cndmask_b32 v{Q+6}, v{Q+6}, 0, s[{sHi}:{sHi+1}]')
    k(f'v_cndmask_b32 v{Q+7}, v{Q+7}, 0, s[{sHi}:{sHi+1}]')
    k(f'v_mfma_f32_32x32x16_bf16 {vr(SS,16)}, {vr(KV,4)}, {vr(Q,4)}, 0')
    k(f'v_mfma_f32_32x32x16_bf16 {vr(SS,16)}, {vr(KV+4,4)}, {vr(Q+4,4)}, {vr(SS,16)}')
    k(f'v_max3_f32 v{vM}, v{SS}, v{SS+1}, v{SS+2}')
    k(f'v_max3_f32 v{vM2}, v{SS+3}, v{SS+4}, v{SS+5}')
    k(f'v_max3_f32 v{vM}, v{vM}, v{SS+6}, v{SS+7}')
    k(f'v_max3_f32 v{vM2}, v{vM2}, v{SS+8}, v{SS+9}')
    k(f'v_max3_f32 v{vM}, v{vM}, v{SS+10}, v{SS+11}')
    k(f'v_max3_f32 v{vM2}, v{vM2}, v{SS+12}, v{SS+13}')
    k(f'v_max3_f32 v{vM}, v{vM}, v{SS+14}, v{SS+15}')
    k(f'v_max_f32 v{vM}, v{vM}, v{vM2}')
    k(f'v_mov_b32 v{vM2}, v{vM}')
    k(f'v_permlane32_swap_b32 v{vM}, v{vM2}')
    k(f'v_max_f32 v{vM}, v{vM}, v{vM2}')
    k(f'v_sub_f32 v{vM}, 0, v{vM}')
    k(f'v_cvt_pk_bf16_f32 v{vC}, v{vM}, 0')
    k(f'ds_write_b32 v{vA0}, v{vC}')
    k('s_waitcnt lgkmcnt(0)')
    k('s_barrier')
    for j in range(1, 4):
        k(f'ds_read_b32 v{vT+j-1}, v{vA0+j}')
    k(f'v_cndmask_b32 v{Q+6}, v{Q+6}, v{vC}, s[{sHi}:{sHi+1}]')
    k('s_waitcnt lgkmcnt(0)')
    for j in range(1, 4):
        k(f'v_cndmask_b32 v{Q+8*j+6}, v{Q+8*j+6}, v{vT+j-1}, s[{sHi}:{sHi+1}]')
        k(f'v_cndmask_b32 v{Q+8*j+7}, v{Q+8*j+7}, 0, s[{sHi}:{sHi+1}]')
    k(f'v_mfma_f32_32x32x16_bf16 {vr(SS,16)}, {vr(KV,4)}, {vr(Q,4)}, 0')
    k(f'v_mfma_f32_32x32x16_bf16 {vr(SS,16)}, {vr(KV+4,4)}, {vr(Q+4,4)}, {vr(SS,16)}')
    k(f's_mov_b32 s{sCnt}, 4')
    k('s_waitcnt vmcnt(8)')
    k('s_nop 7')
    k('.p2align 6')
    k.label('K2_LOOP')
    for tb in range(4):
        for qt in range(4):
            n = tb*4 + qt
            Sc = SS + 16*(n & 1); Sn = SS + 16*((n+1) & 1)
            nb = tb if qt < 3 else (tb+1) % 4
            nq = (qt+1) % 4
            Kn = KV + 16*nb
            pb = tb if qt > 0 else (tb-1) % 4
            pq = (qt-1) % 4
            Vp = KV + 16*pb + 8
            Vc = KV + 16*tb + 8
            e = lambda i: f'v_exp_f32 v{Sc+i}, v{Sc+i}'
            c = lambda i: f'v_cvt_pk_bf16_f32 v{P+i}, v{Sc+2*i}, v{Sc+2*i+1}'
            if qt == 3:
                k('s_waitcnt vmcnt(8)')
            k(f'v_mfma_f32_32x32x16_bf16 {vr(Sn,16)}, {vr(Kn,4)}, {vr(Q+8*nq,4)}, 0')
            k.extend([e(0), e(1), e(2), e(3), c(0), c(1)])
            k(f'v_mfma_f32_32x32x16_bf16 {vr(O+16*pq,16)}, {vr(Vp+4,4)}, {vr(P+4,4)}, {vr(O+16*pq,16)}')
            if qt == 1:
                load_tile((tb+3) % 4)
            k.extend([e(4), e(5), e(6), e(7), c(2), c(3)])
            k(f'v_mfma_f32_32x32x16_bf16 {vr(Sn,16)}, {vr(Kn+4,4)}, {vr(Q+8*nq+4,4)}, {vr(Sn,16)}')
            k.extend([e(8), e(9), e(10), e(11), c(4), c(5)])
            k(f'v_mfma_f32_32x32x16_bf16 {vr(O+16*qt,16)}, {vr(Vc,4)}, {vr(P,4)}, {vr(O+16*qt,16)}')
            k.extend([e(12), e(13), e(14), e(15), c(6), c(7)])
    k(f's_sub_u32 s{sCnt}, s{sCnt}, 1')
    k(f's_cmp_lg_u32 s{sCnt}, 0')
    k('s_cbranch_scc1 K2_LOOP')
    k(f'v_mfma_f32_32x32x16_bf16 {vr(O+48,16)}, {vr(KV+48+8+4,4)}, {vr(P+4,4)}, {vr(O+48,16)}')
    for j in range(1, 4):
        k(f's_add_u32 s{sT}, s{sW}, {j}')
        k(f's_and_b32 s{sT}, s{sT}, 3')
        k(f's_mul_i32 s{sT}, s{sT}, 12288')
        k(f's_add_u32 s{sT}, s{sT}, {(j-1)*4096}')
        k(f'v_add_u32 v{vA0+j}, s{sT}, v{vL16}')
    for j in range(1, 4):
        for q in range(4):
            k(f'ds_write_b128 v{vA0+j}, {vr(O+16*j+4*q,4)} offset:{q*1024}')
    k(f's_mul_i32 s{sT}, s{sW}, 12288')
    k(f'v_add_u32 v{vA0}, s{sT}, v{vL16}')
    k('s_waitcnt lgkmcnt(0)')
    k('s_barrier')
    R = SS
    dst = [SS, SS+16, KV]
    for j in range(3):
        for q in range(4):
            k(f'ds_read_b128 {vr(dst[j]+4*q,4)}, v{vA0} offset:{j*4096+q*1024}')
    for j in range(3):
        k(f's_waitcnt lgkmcnt({8-4*j})')
        for i in range(16):
            k(f'v_add_f32 v{O+i}, v{O+i}, v{dst[j]+i}')
    k(f'v_mov_b32 v{vL}, v{O+12}')
    k(f'v_mov_b32 v{vL2}, v{O+12}')
    k(f'v_permlane32_swap_b32 v{vL}, v{vL2}')
    k(f'v_rcp_f32 v{vL2}, v{vL2}')
    for i in range(16):
        k(f'v_mul_f32 v{O+i}, v{O+i}, v{vL2}')
    for i in range(8):
        k(f'v_cvt_pk_bf16_f32 v{P+i}, v{O+2*i}, v{O+2*i+1}')
    k(f'v_cndmask_b32 v{P+6}, v{P+6}, 0, s[{sHi}:{sHi+1}]')
    k(f'v_cndmask_b32 v{P+7}, v{P+7}, 0, s[{sHi}:{sHi+1}]')
    k(f's_lshl_b32 s{sT}, s{sQB}, 2')
    k(f's_add_u32 s{sT}, s{sT}, s{sW}')
    k(f's_mul_i32 s{sT}, s{sT}, {AF_RT_STRIDE}')
    k(f's_lshl_b32 s{sT2}, s{sH}, 11')
    k(f's_add_u32 s{sT}, s{sT}, s{sT2}')
    k(f's_add_u32 s{sT}, s{sT}, {AF_OFF + 56*2048}')
    k(f'buffer_store_dwordx4 {vr(P,4)}, v{vL16}, s[8:11], s{sT} offen')
    k(f'buffer_store_dwordx4 {vr(P+4,4)}, v{vL16}, s[8:11], s{sT} offen offset:1024')
    k.label('K2_END')
    k('s_endpgm')
    n = k.fix_hazards()
    return k, 232, 49152+512
```

```python
from common import *

def gen_k3(name='outp_kernel'):
    k = Kernel(name)
    NB = 6
    ACC = 32
    AB = 96
    WF = 192
    XR = 224
    sW=12; sRB=13; sCB=14; sT=15; sT2=16; sAoff=17; sWoff=18; sM0=19; sU=20
    vLane=1; vL16=2; vA1=3; vDma=4; vT=5; vT2=6; vTr0=7; vTr1=8; vXo=9; vRed=10; vT3=11
    RING = 24576
    k('s_cmp_ge_u32 s2, 224')
    k('s_cbranch_scc1 K3_END')
    k(f's_load_dwordx2 s[4:5], s[0:1], {KA_WS}')
    k(f's_load_dwordx2 s[24:25], s[0:1], {KA_W2}')
    k(f's_load_dwordx2 s[26:27], s[0:1], {KA_WO}')
    k(f's_load_dwordx2 s[28:29], s[0:1], {KA_X}')
    k(f's_load_dwordx2 s[30:31], s[0:1], {KA_B2}')
    k(f's_load_dwordx2 s[32:33], s[0:1], {KA_OUT}')
    k(f'v_and_b32 v{vLane}, 63, v0')
    k(f'v_lshrrev_b32 v{vT}, 6, v0')
    k(f'v_lshlrev_b32 v{vL16}, 4, v{vLane}')
    k(f'v_readfirstlane_b32 s{sW}, v{vT}')
    k(f's_and_b32 s{sT}, s2, 7')
    k(f's_lshr_b32 s{sT2}, s2, 3')
    k(f's_mul_i32 s{sRB}, s{sT2}, 37')
    k(f's_lshr_b32 s{sRB}, s{sRB}, 8')
    k(f's_mul_i32 s{sCB}, s{sRB}, 7')
    k(f's_sub_u32 s{sCB}, s{sT2}, s{sCB}')
    k(f's_lshl_b32 s{sT}, s{sT}, 2')
    k(f's_add_u32 s{sRB}, s{sRB}, s{sT}')
    k(f'v_add_u32 v{vA1}, {AF_RT_STRIDE}, v{vL16}')
    k(f'v_lshrrev_b32 v{vT}, 3, v{vLane}')
    k(f'v_mul_u32_u24 v{vDma}, 896, v{vT}')
    k(f'v_bfe_u32 v{vT}, v{vLane}, 4, 1')
    k(f'v_lshlrev_b32 v{vT}, 2, v{vT}')
    k(f'v_and_b32 v{vT2}, 7, v{vLane}')
    k(f'v_xor_b32 v{vT}, v{vT}, v{vT2}')
    k(f'v_lshlrev_b32 v{vT}, 4, v{vT}')
    k(f'v_add_u32 v{vDma}, v{vDma}, v{vT}')
    k(f's_lshl_b32 s{sT}, s{sCB}, 7')
    k(f'v_add_u32 v{vDma}, s{sT}, v{vDma}')
    k(f'v_lshrrev_b32 v{vT}, 5, v{vLane}')
    k(f'v_lshlrev_b32 v{vT}, 2, v{vT}')
    k(f'v_bfe_u32 v{vT2}, v{vLane}, 2, 2')
    k(f'v_add_u32 v{vT}, v{vT}, v{vT2}')
    k(f'v_lshlrev_b32 v{vTr0}, 7, v{vT}')
    k(f'v_lshrrev_b32 v{vT2}, 1, v{vT2}')
    k(f'v_lshlrev_b32 v{vT2}, 6, v{vT2}')
    k(f'v_add_u32 v{vTr0}, v{vTr0}, v{vT2}')
    k(f'v_bfe_u32 v{vT}, v{vLane}, 4, 1')
    k(f'v_lshlrev_b32 v{vT}, 5, v{vT}')
    k(f'v_add_u32 v{vTr0}, v{vTr0}, v{vT}')
    k(f'v_and_b32 v{vT}, 3, v{vLane}')
    k(f'v_lshlrev_b32 v{vT}, 3, v{vT}')
    k(f'v_add_u32 v{vTr0}, v{vTr0}, v{vT}')
    k(f's_mul_i32 s{sM0}, s{sW}, {RING}')
    k(f'v_add_u32 v{vTr0}, s{sM0}, v{vTr0}')
    k(f'v_xor_b32 v{vTr1}, 64, v{vTr0}')
    k(f's_mul_i32 s{sAoff}, s{sRB}, {2*AF_RT_STRIDE}')
    k(f's_lshl_b32 s{sT}, s{sW}, 11')
    k(f's_add_u32 s{sAoff}, s{sAoff}, s{sT}')
    k(f's_add_u32 s{sAoff}, s{sAoff}, {AF_OFF}')
    k(f's_mul_i32 s{sWoff}, s{sW}, {32*896}')
    k(f'v_lshrrev_b32 v{vT}, 2, v0')
    k(f'v_mul_u32_u24 v{vXo}, 896, v{vT}')
    k(f'v_and_b32 v{vT2}, 3, v0')
    k(f'v_lshlrev_b32 v{vT3}, 5, v{vT2}')
    k(f'v_add_u32 v{vXo}, v{vXo}, v{vT3}')
    k(f's_mul_i32 s{sT}, s{sRB}, {64*896}')
    k(f's_lshl_b32 s{sT2}, s{sCB}, 7')
    k(f's_add_u32 s{sT}, s{sT}, s{sT2}')
    k(f'v_add_u32 v{vXo}, s{sT}, v{vXo}')
    k(f'v_add_u32 v{vT3}, s{sT2}, v{vT3}')
    k(f'v_mul_u32_u24 v{vRed}, 272, v{vT}')
    k(f'v_lshlrev_b32 v{vT2}, 6, v{vT2}')
    k(f'v_add_u32 v{vRed}, v{vRed}, v{vT2}')
    k('s_waitcnt lgkmcnt(0)')
    srd(k, 8, 4, WS_RECORDS)
    srd(k, 36, 24, F*896)
    srd(k, 40, 26, D*896)
    srd(k, 44, 28, S*896)
    srd(k, 48, 30, 896)
    srd(k, 52, 32, S*896)
    def issue(i):
        slot = i % NB
        a = AB + 16*slot
        if i == 14:
            k(f's_mul_i32 s{sWoff}, s{sW}, {28*896}')
        sr = 36 if i < 14 else 40
        for u in range(4):
            k(f's_add_u32 s{sT}, s{sM0}, {slot*4096 + u*1024}')
            k(f's_mov_b32 m0, s{sT}')
            if u:
                k(f's_add_u32 s{sU}, s{sWoff}, {u*7168}')
                k(f'buffer_load_dwordx4 v{vDma}, s[{sr}:{sr+3}], s{sU} offen lds')
            else:
                k(f'buffer_load_dwordx4 v{vDma}, s[{sr}:{sr+3}], s{sWoff} offen lds')
        k(f'buffer_load_dwordx4 {vr(a,4)}, v{vL16}, s[8:11], s{sAoff} offen')
        k(f'buffer_load_dwordx4 {vr(a+4,4)}, v{vL16}, s[8:11], s{sAoff} offen offset:1024')
        k(f'buffer_load_dwordx4 {vr(a+8,4)}, v{vA1}, s[8:11], s{sAoff} offen')
        k(f'buffer_load_dwordx4 {vr(a+12,4)}, v{vA1}, s[8:11], s{sAoff} offen offset:1024')
        k(f's_add_u32 s{sAoff}, s{sAoff}, {4*2048}')
        k(f's_add_u32 s{sWoff}, s{sWoff}, {128*896 if i < 14 else 112*896}')
    PF = NB - 1
    for i in range(PF): issue(i)
    for i in range(64): k(f'v_mov_b32 v{ACC+i}, 0')
    NI = 18
    for i in range(NI):
        slot = i % NB
        a = AB + 16*slot
        issued_after = min(NI, i+PF) - (i+1)
        k(f's_waitcnt vmcnt({8*issued_after})')
        wf = WF + 16*(i & 1)
        for s in range(2):
            for ct in range(2):
                vt = vTr0 if ct == 0 else vTr1
                r = wf + 8*s + 4*ct
                k(f'ds_read_b64_tr_b16 {vr(r,2)}, v{vt} offset:{slot*4096 + s*2048}')
                k(f'ds_read_b64_tr_b16 {vr(r+2,2)}, v{vt} offset:{slot*4096 + s*2048 + 1024}')
        if i == NI-1-PF+1 or (i + PF == NI):
            pass
        for s in range(2):
            k(f's_waitcnt lgkmcnt({4 if s == 0 else 0})')
            for ct in range(2):
                for rt in range(2):
                    acc = ACC + 16*(2*ct+rt)
                    k(f'v_mfma_f32_32x32x16_bf16 {vr(acc,16)}, {vr(wf+8*s+4*ct,4)}, {vr(a+8*rt+4*s,4)}, {vr(acc,16)}')
        if i + PF < NI:
            issue(i + PF)
    k(f'buffer_load_dwordx4 {vr(XR,4)}, v{vXo}, s[44:47], 0 offen')
    k(f'buffer_load_dwordx4 {vr(XR+4,4)}, v{vXo}, s[44:47], 0 offen offset:16')
    k(f'buffer_load_dwordx4 {vr(XR+8,4)}, v{vT3}, s[48:51], 0 offen')
    k(f'buffer_load_dwordx4 {vr(XR+12,4)}, v{vT3}, s[48:51], 0 offen offset:16')
    k(f'v_and_b32 v{vT}, 31, v{vLane}')
    k(f'v_mul_u32_u24 v{vT}, 272, v{vT}')
    k(f'v_lshrrev_b32 v{vT2}, 5, v{vLane}')
    k(f'v_lshlrev_b32 v{vT2}, 4, v{vT2}')
    k(f'v_add_u32 v{vT}, v{vT}, v{vT2}')
    k(f'v_add_u32 v{vT}, s{sM0}, v{vT}')
    for ct in range(2):
        for rt in range(2):
            acc = ACC + 16*(2*ct+rt)
            for c in range(4):
                k(f'ds_write_b128 v{vT}, {vr(acc+4*c,4)} offset:{rt*32*272 + ct*128 + c*32}')
    k('s_waitcnt lgkmcnt(0)')
    k('s_barrier')
    RD = AB
    k(f'v_add_u32 v{vT}, {2*RING}, v{vRed}')
    for p in range(4):
        for q in range(4):
            k(f'ds_read_b128 {vr(RD+16*p+4*q,4)}, v{vRed if p < 2 else vT} offset:{(p%2)*RING + q*16}')
    k('s_waitcnt lgkmcnt(8)')
    for i in range(16): k(f'v_add_f32 v{RD+i}, v{RD+i}, v{RD+16+i}')
    k('s_waitcnt lgkmcnt(0)')
    for i in range(16): k(f'v_add_f32 v{RD+32+i}, v{RD+32+i}, v{RD+48+i}')
    for i in range(16): k(f'v_add_f32 v{RD+i}, v{RD+i}, v{RD+32+i}')
    k('s_waitcnt vmcnt(0)')
    k('s_mov_b32 s60, 0xffff0000')
    T = ACC
    for j in range(8):
        k(f'v_lshlrev_b32 v{T}, 16, v{XR+j}')
        k(f'v_and_b32 v{T+1}, s60, v{XR+j}')
        k(f'v_lshlrev_b32 v{T+2}, 16, v{XR+8+j}')
        k(f'v_and_b32 v{T+3}, s60, v{XR+8+j}')
        k(f'v_add_f32 v{RD+2*j}, v{RD+2*j}, v{T}')
        k(f'v_add_f32 v{RD+2*j+1}, v{RD+2*j+1}, v{T+1}')
        k(f'v_add_f32 v{RD+2*j}, v{RD+2*j}, v{T+2}')
        k(f'v_add_f32 v{RD+2*j+1}, v{RD+2*j+1}, v{T+3}')
        k(f'v_cvt_pk_bf16_f32 v{T+8+j}, v{RD+2*j}, v{RD+2*j+1}')
    k(f'buffer_store_dwordx4 {vr(T+8,4)}, v{vXo}, s[52:55], 0 offen')
    k(f'buffer_store_dwordx4 {vr(T+12,4)}, v{vXo}, s[52:55], 0 offen offset:16')
    k.label('K3_END')
    k('s_endpgm')
    k.fix_hazards()
    return k, 240, 4*RING
```

```python
import sys
from common import *
import k1, k2, k3
def build(extra_empty=0):
    ks = [k1.gen_k1(), k2.gen_k2(), k3.gen_k3()]
    grids = [224, 256, 224]
    hdr = open('parallel_sum__mha_block__dense_activation_gelu__prompt.s.ref').read().split('\n')
    top = [l for l in hdr if l.startswith(';') and '@launch' not in l and 'Override launch' not in l and 'grid=ceil' not in l]
    out = '\n'.join(top) + '\n'
    for (k, nv, lds), g in zip(ks, grids):
        out += f'; @launch kernel={k.name} grid=({g},1,1) block=(256,1,1) lds={lds}\n'
    for e in range(extra_empty):
        out += f'; @launch kernel=empty_kernel grid=(256,1,1) block=(256,1,1) lds=0\n'
    out += '.amdgcn_target "amdgcn-amd-amdhsa--gfx950"\n.text\n'
    for (k, nv, lds) in ks:
        out += kernel_header(k.name) + k.text()
    if extra_empty:
        out += kernel_header('empty_kernel') + '    s_endpgm\n'
    out += '.section .rodata,"a"\n'
    for (k, nv, lds) in ks:
        out += kernel_desc(k.name, nv)
    if extra_empty:
        out += kernel_desc('empty_kernel', 8)
    return out
if __name__ == '__main__':
    dst = sys.argv[1] if len(sys.argv) > 1 else 'parallel_sum__mha_block__dense_activation_gelu__prompt.s'
    ex = int(sys.argv[2]) if len(sys.argv) > 2 else 0
    open(dst, 'w').write(build(ex))
    print('written', dst)
```
